```python
import torch

def _softmax(x, axis=-1):
    return torch.softmax(x, dim=axis)
def _gelu(x):
    return torch.nn.functional.gelu(x, approximate="tanh")
def _silu(x):
    return torch.nn.functional.silu(x)
def _sigmoid(x):
    return torch.sigmoid(x)
def _layernorm(x, axis=-1, eps=1e-5):
    m = x.mean(dim=axis, keepdim=True)
    v = x.var(dim=axis, keepdim=True, unbiased=False)
    return (x - m) / torch.sqrt(v + eps)
def _scatter_add(tgt, idx, src, axis=0):
    return tgt.clone().index_add_(axis, idx, src)
def _segment_sum(src, seg, n):
    out = torch.zeros((n,) + src.shape[1:], dtype=src.dtype)
    return out.index_add_(0, seg, src)
def _pad(x, pw):
    flat = tuple(v for pair in reversed(pw) for v in pair)
    return torch.nn.functional.pad(x, flat)

kernel_name = 'recurrent_scan__mha_block_cached__dense_activation_squared_relu__decode'

def setup_inputs():

    _w = (lambda a: (lambda t: t.to(torch.bfloat16) if t.is_floating_point() else t)(torch.as_tensor(a)))
    def _A_setup():
        B, Sq, D = 4, 1, 448
        H, Sk, Dh = 16, 4096, 256
        return {
            "x": _w((lambda *s: torch.randn(*s, dtype=torch.bfloat16) * 0.05)(B, Sq, D)),
            "k_cache": _w((lambda *s: torch.randn(*s, dtype=torch.bfloat16) * 0.8)(B, H, Sk, Dh)),
            "v_cache": _w((lambda *s: torch.randn(*s, dtype=torch.bfloat16) * 0.2)(B, H, Sk, Dh)),
            "wq": _w((lambda *s: torch.randn(*s, dtype=torch.bfloat16) * 0.8)(D, H * Dh) * (D ** -0.5)),
            "wo": _w((lambda *s: torch.randn(*s, dtype=torch.bfloat16) * 0.2)(H * Dh, D) * ((H * Dh) ** -0.5)),
        }
    _A_in = _A_setup()

    def _B_setup():
        B, S, D, F = 4, 1, 448, 1792
        return {
            "x": _w((lambda *s: torch.randn(*s, dtype=torch.bfloat16) * 0.05)(B, S, D)),
            "w1": _w((lambda *s: torch.randn(*s, dtype=torch.bfloat16) * 0.1)(D, F)),
            "b1": _w((lambda *s: torch.randn(*s, dtype=torch.bfloat16) * 0.1)(F)),
            "w2": _w((lambda *s: torch.randn(*s, dtype=torch.bfloat16) * 0.1)(F, D)),
            "b2": _w((lambda *s: torch.randn(*s, dtype=torch.bfloat16) * 0.1)(D)),
        }
    _B_in = _B_setup()

    return {
        "A_x": _A_in["x"],
        "A_k_cache": _A_in["k_cache"],
        "A_v_cache": _A_in["v_cache"],
        "A_wq": _A_in["wq"],
        "A_wo": _A_in["wo"],
        "B_x": _B_in["x"],
        "B_w1": _B_in["w1"],
        "B_b1": _B_in["b1"],
        "B_w2": _B_in["w2"],
        "B_b2": _B_in["b2"],
    }

def reference(A_x, A_k_cache, A_v_cache, A_wq, A_wo, B_x, B_w1, B_b1, B_w2, B_b2):
    def _A_ref(x, k_cache, v_cache, wq, wo):
        B, Sq, D = x.shape
        H, Dh = 16, 256
        q = (lambda x, *d: x.permute(*d))((x @ wq).reshape(B, Sq, H, Dh), 0, 2, 1, 3)
        scores = torch.einsum("bhqd,bhkd->bhqk", q, k_cache) * (Dh ** -0.5)
        p = _softmax(scores, axis=-1)
        o = torch.einsum("bhqk,bhkd->bhqd", p, v_cache)
        return (lambda x, *d: x.permute(*d))(o, 0, 2, 1, 3).reshape(B, Sq, H * Dh) @ wo

    def _B_ref(x, w1, b1, w2, b2):
        h = torch.einsum("bsd,df->bsf", x, w1) + b1
        zero = torch.zeros_like(h)
        r = torch.where(h > zero, h, zero)
        h = r * r
        out = torch.einsum("bsf,fd->bsd", h, w2) + b2
        return out

    x = A_x
    xn = _layernorm(x, axis=-1)
    s = _A_ref(xn, A_k_cache, A_v_cache, A_wq, A_wo)
    g = _silu(_B_ref(xn, B_w1, B_b1, B_w2, B_b2))
    return x + s * g
```

```python
import sys
KN = "recurrent_scan__mha_block_cached__dense_activation_squared_relu__decode_kernel"
def gen(waves=1, n=56, grp=4, lds=0, nt="nt", grid=256):
    o = []; A = o.append
    A(f"; @launch grid=({grid},1,1) block=({waves*64},1,1) lds=0")
    A('.amdgcn_target "amdgcn-amd-amdhsa--gfx950"')
    A(".text"); A(f".globl {KN}"); A(".p2align 8"); A(f".type {KN},@function"); A(f"{KN}:")
    A(f"s_cmp_ge_u32 s2, {grid}"); A("s_cbranch_scc1 L_end")
    A("s_load_dwordx4 s[4:7], s[0:1], 8"); A("s_load_dwordx2 s[16:17], s[0:1], 96")
    A("v_lshrrev_b32 v1, 6, v0"); A("s_nop 0"); A("v_readfirstlane_b32 s3, v1")
    A("v_and_b32 v0, 63, v0"); A("v_lshlrev_b32 v1, 4, v0")
    A("s_lshl_b32 s18, s2, 19")
    A("s_waitcnt lgkmcnt(0)")
    A("s_add_u32 s8, s4, s18"); A("s_addc_u32 s9, s5, 0"); A(f"s_mov_b32 s10, {1<<19}"); A("s_mov_b32 s11, 0x20000")
    A("s_lshl_b32 s19, s3, 12"); A("v_add_u32 v1, s19, v1")
    A("s_mov_b32 s22, 0x78000"); A(f"buffer_load_dwordx4 v[4:7], v1, s[8:11], s22 offen {nt}"); A("s_waitcnt vmcnt(0)")
    A("s_mov_b32 s24, 0")
    A("L_pass:")
    A("s_barrier")
    A("s_mul_i32 s22, s24, 0");
    A("s_memtime s[40:41]")
    k = 1
    for j in range(n):
        if j % 4 == 0: A(f"s_mov_b32 s22, {(j//4)*waves*4096}")
        if lds:
            A(f"s_lshl_b32 s23, s3, 14"); A(f"s_add_u32 s23, s23, {(j%16)*1024 - (j%4)*1024}"); A("s_mov_b32 m0, s23"); A("s_nop 0")
            A(f"buffer_load_dwordx4 v1, s[8:11], s22 offen offset:{(j%4)*1024} {nt} lds")
        else:
            A(f"buffer_load_dwordx4 v[{4+4*j}:{7+4*j}], v1, s[8:11], s22 offen offset:{(j%4)*1024} {nt}")
        if j % grp == grp - 1:
            A(f"s_memtime s[{40+2*k}:{41+2*k}]"); k += 1
    A(f"s_waitcnt vmcnt({n-1})"); A(f"s_memtime s[{40+2*k}:{41+2*k}]"); k += 1
    A(f"s_waitcnt vmcnt(0)"); A(f"s_memtime s[{40+2*k}:{41+2*k}]"); k += 1
    A("s_waitcnt lgkmcnt(0)")
    A("s_add_u32 s16, s16, 0x10000000"); A("s_addc_u32 s17, s17, 0"); A("s_mov_b32 s18, 0x100000"); A("s_mov_b32 s19, 0x20000")
    for i in range(k):
        A(f"s_sub_u32 s30, s{40+2*i}, s40"); A(f"v_writelane_b32 v2, s30, {i}")
    A(f"s_mul_i32 s32, s2, {waves}"); A("s_add_u32 s32, s32, s3"); A("s_lshl_b32 s32, s32, 7")
    A("v_lshlrev_b32 v3, 2, v0"); A("s_mov_b64 exec, 0xffffffff")
    A("buffer_store_dword v2, v3, s[16:19], s32 offen")
    A("L_end:"); A("s_endpgm")
    A('.section .rodata,"a"'); A(".p2align 6"); A(f".amdhsa_kernel {KN}")
    A(f"  .amdhsa_next_free_vgpr 256"); A("  .amdhsa_next_free_sgpr 102"); A(f"  .amdhsa_accum_offset 256")
    A("  .amdhsa_group_segment_fixed_size 0"); A("  .amdhsa_kernarg_size 104"); A("  .amdhsa_user_sgpr_count 2")
    A("  .amdhsa_user_sgpr_kernarg_segment_ptr 1"); A("  .amdhsa_system_sgpr_workgroup_id_x 1"); A(".end_amdhsa_kernel")
    return "\n".join(o) + "\n"
from build import build
for name, kw in [("q1", dict(waves=1, n=56)), ("q1g8", dict(waves=1, n=56, grid=8)), ("q8", dict(waves=8, n=16, grp=2)), ("q8g8", dict(waves=8, n=16, grp=2, grid=8)), ("q8l", dict(waves=8, n=16, grp=2, lds=1)), ("q1l", dict(waves=1, n=56, lds=1, grid=8))]:
    open(name + ".s", "w").write(gen(**kw)); build(name + ".s")
```

```python
import re
class Asm:
    def __init__(self):
        self.L = []
        self.vm = []
    def __call__(self, s): self.L.append(s)
    def vmem(self, s, tag=None, uncounted=False):
        self.L.append(s)
        if not uncounted: self.vm.append(tag)
    def need(self, tag, extra=0):
        i = len(self.vm) - 1 - self.vm[::-1].index(tag)
        if i <= getattr(self, "done", -1): return None
        self.done = i
        n = min(63, len(self.vm) - 1 - i + extra)
        self.L.append(f"s_waitcnt vmcnt({n})")
        return n
    def mark(self): return len(self.vm)

def regs(tok, kind):
    out = []
    for m in re.finditer(r'(?<![\w.])' + kind + r'(\d+)\b|(?<![\w.])' + kind + r'\[(\d+):(\d+)\]', tok):
        if m.group(1) is not None: out.append(int(m.group(1)))
        else: out += list(range(int(m.group(2)), int(m.group(3)) + 1))
    return out
TRANS = ("v_exp_", "v_log_", "v_rcp_", "v_rsq_", "v_sqrt_", "v_sin_", "v_cos_")
def parse(line):
    s = line.split(";")[0].strip()
    if not s or s.endswith(":") or s.startswith("."): return None
    op, _, rest = s.partition(" ")
    ops = [x.strip() for x in re.split(r',(?![^\[]*\])', rest)] if rest else []
    d = dict(op=op, vw=set(), vr=set(), sw=set(), sr=set(), C=set())
    isv = op.startswith("v_")
    d["valu"] = isv and not op.startswith(("v_mfma", "v_smfmac"))
    d["mfma"] = op.startswith(("v_mfma", "v_smfmac"))
    d["dpp"] = "_dpp" in op or "row_" in rest or "quad_perm" in rest
    d["perm"] = op.startswith("v_permlane")
    d["rdl"] = op.startswith("v_readlane") or op.startswith("v_readfirstlane")
    d["trans"] = op.startswith(TRANS)
    d["dot"] = op.startswith("v_dot")
    d["vmem"] = op.startswith(("buffer_", "global_"))
    d["ds"] = op.startswith("ds_")
    d["store"] = d["vmem"] and "store" in op
    d["wide"] = d["store"] and ("x4" in op or "x3" in op)
    def S(t):
        r = set(regs(t, "s"))
        if "vcc" in t: r |= {106, 107}
        return r
    if isv:
        if op.startswith("v_cmp") or d["rdl"]:
            d["sw"] = S(ops[0]); srcs = ops[1:]
        else:
            d["vw"] = set(regs(ops[0], "v")); srcs = ops[1:]
        for t in srcs:
            d["vr"] |= set(regs(t, "v")); d["sr"] |= S(t)
        if d["perm"]: d["vw"] |= set(regs(ops[1], "v")); d["vr"] |= set(regs(ops[0], "v"))
        if d["dpp"] or "dot2c" in op or "fmac" in op: d["vr"] |= d["vw"]
        if op.startswith("v_cndmask") and len(ops) == 3: d["sr"] |= {106, 107}
        if d["mfma"]: d["C"] = set(regs(ops[3], "v")); d["AB"] = set(regs(ops[1], "v")) | set(regs(ops[2], "v"))
        if op.startswith("v_smfmac"):
            d["AB"] |= d["C"]; d["C"] = set(d["vw"]); d["vr"] |= d["vw"]
    elif d["vmem"]:
        if d["store"] or "atomic" in op:
            for t in ops: d["vr"] |= set(regs(t, "v"))
            d["data"] = set(regs(ops[0], "v"))
        else:
            d["vw"] = set(regs(ops[0], "v"))
            for t in ops[1:]: d["vr"] |= set(regs(t, "v"))
        for t in ops: d["sr"] |= S(t)
    elif d["ds"]:
        if "read" in op or "permute" in op:
            d["vw"] = set(regs(ops[0], "v"))
            for t in ops[1:]: d["vr"] |= set(regs(t, "v"))
        else:
            for t in ops: d["vr"] |= set(regs(t, "v"))
    else:
        d["nop"] = int(ops[0]) + 1 if op == "s_nop" else None
    return d
def required(p, c):
    n = 0
    rv = p["vw"] & c["vr"]; wv = p["vw"] & c["vw"]
    if p["valu"]:
        if rv:
            if c["dpp"] or c["perm"] or c["mfma"]: n = max(n, 2)
            if c["rdl"]: n = max(n, 1)
            if p["trans"]: n = max(n, 1)
        if p["dot"] and (rv or wv):
            same = c["op"] == p["op"]
            if same and wv:
                pass
            else: n = max(n, 3)
        if p["sw"] & c["sr"]:
            if c["valu"] or c["mfma"]: n = max(n, 4 if c["rdl"] else 2)
            if c["vmem"]: n = max(n, 5)
    if p["mfma"]:
        if c["mfma"]:
            if p["vw"] & c["AB"]: n = max(n, 8)
            if (p["vw"] & c["C"]) and p["vw"] != c["C"]: n = max(n, 6)
        elif rv or wv: n = max(n, 8)
    if p.get("wide") and (p["data"] & c["vw"]): n = max(n, 2)
    return n
def hazard_pass(lines, window=12):
    out = []; hist = []
    for ln in lines:
        d = parse(ln)
        st = ln.split(";")[0].strip()
        if d is None:
            if st.endswith(":"):
                lbl = st[:-1]
                for k, p in enumerate(hist):
                    if p.get("br") == lbl:
                        for q in hist[k+1:]: q["w0"] = True
            out.append(ln); continue
        if d["op"].startswith("s_cbranch") or d["op"] == "s_branch": d["br"] = st.split()[-1]
        need = 0; dist = 0
        for p in reversed(hist):
            r = required(p, d) - dist
            need = max(need, r)
            dist += 0 if p.get("w0") else (p.get("nop") or 1)
            if dist >= window: break
        if need > 0:
            out.append(f"s_nop {need-1}"); hist.append(dict(parse(f"s_nop {need-1}")))
        out.append(ln); hist.append(d)
        hist = hist[-4*window:]
    return out
```

```python
import sys, struct
sys.path.insert(0, "gen"); sys.path.insert(0, "exp")
from asmlib import Asm, hazard_pass
KN = "recurrent_scan__mha_block_cached__dense_activation_squared_relu__decode_kernel"
HDR = open("recurrent_scan__mha_block_cached__dense_activation_squared_relu__decode.s.ref").read().split("; Override")[0]
PART = 0; PSTR = 1040; QP = 8320; MX = 10368; LS = 10400; XN = 10432; CN = 11456; MODE = 11472; QB = QP; HP = 11520; YP = 12544
LDS_SIZE = YP + 8 * 2048
REC = 2688; RB = 64 * REC
PREG = 73728; QREG = 4096; FREG = 128 << 10; YREG = 1 << 20
LOG2E = 1.4426950408889634
f2u = lambda x: struct.unpack("<I", struct.pack("<f", x))[0]

def gen(W=4, WK=4, WT=8, B0=28, kf=4, I0b=6, I1=8, I2=10, xs=14, xe=2, xe2=23, fb=48, ra=36, rb=50, pace=4, pollk=2,
        stamps=0, wnt="", wont="", kvnt="nt", rl=1, pt=0, rot=1, fshort=0, ost="sc1", np_=1, pgap=8, amp=None,
        nowo=0, nof=0, noq=0, notail=0, noffn=0, nored=0, wqrow=0, w1c=0, fa=48, We=8, Wf=52, mp=1, psl=0, bars=(40, 64, 88, 108), WB=6, fm=1, wl=0, wl_at=128, wq0=4, wqe=2, qd=9, qb=2, xt=(3, 2), WL=3, NP=1, pg=3, hy=1, k2=3, qb0=3, wq1=3, bk=(0,), lc=0, c0=32, evi=8, evd=5, rdi=2, thr=16, lv=(3, 4, 4, 5), afl='', qw=0, qp_at=20, qp_d=5, sm=1, r16=1, so=1, bo=None, sf='sc1', lf='sc1', y64=0, pubi=2):
    a = Asm(); A = a
    vL, vKV, vWX, vWY, vW1 = 0, 1, 3, 4, 5
    vM = 6; vPA, vYR = 10, 11; QG = 12; vS = 20; vA0 = 24; vA1 = 28; vO = 32; vX = 36; vY = 40
    vST, vSC, vZ, vP, vG, vXF, vB2, vB1, vRD, vOA, vPW, vPR = range(44, 56)
    T = 56; RING = 64; NR = 16; RA = 128
    NX = max(0, B0 - 16); assert NX <= 12
    WQR = RA; W1R = RA + 4 * 24; W2R = RA + 4 * 28
    sreg = lambda s_: RING + 4 * s_ if s_ < 16 else RA + 4 * 12 + 4 * (s_ - 16)
    q4 = lambda r: f"v[{r}:{r+3}]"
    sK, sV, sWQ, sWO, sW1, sW2, sX, sB1, sB2, sWS, sOUT = [f"s[{8+4*i}:{11+4*i}]" for i in range(11)]
    sH, sSP, sB, sJ, sT0, sT1 = 52, 53, 54, 55, 56, 57
    sKVo, sWQo, sW2o, sW1o, sTAG, sDST, sMODE, sRED = 58, 59, 60, 61, 62, 63, 4, 5
    sMb1, sMb0, sMz = "s[66:67]", "s[68:69]", "s[70:71]"
    sC, sRDo, sCNT, sQo, sWOb, sF, sROT, sU = 72, 73, 74, 96, 97, 98, 99, 100
    sRET = "s[90:91]"
    nst = [0]
    def stamp(lane=None):
        if stamps:
            A("s_memrealtime s[94:95]"); A("s_waitcnt lgkmcnt(0)"); A(f"v_writelane_b32 v2, s94, {nst[0]+2 if lane is None else lane}")
            nst[0] += 1
    def rnd(r): A(f"v_cvt_pk_bf16_f32 v{r}, v{r}, v{r}"); A(f"v_and_b32 v{r}, 0xffff0000, v{r}")
    DP = "row_mask:0xf bank_mask:0xf"
    def rowall(op, r):
        for k in (8, 4, 2, 1): A(f"{op}_dpp v{r}, v{r}, v{r} row_ror:{k} {DP}")
    def xrow(op, r, t, n):
        A(f"v_mov_b32 v{t}, v{r}"); A(f"v_permlane{n}_swap_b32 v{r}, v{t}"); A(f"{op} v{r}, v{r}, v{t}")
    def amat(dst, p, t):
        for r in range(4): A(f"v_and_b32_dpp v{dst+r}, v{p}, v{vM+r} row_newbcast:{t} {DP}")
    def mfma(acc, am, b, first=False): A(f"v_mfma_f32_16x16x32_bf16 {q4(acc)}, {q4(am)}, {q4(b)}, {'0' if first else q4(acc)}")
    def tree8(y):
        for k in range(4): A(f"v_permlane32_swap_b32 v{y[2*k]}, v{y[2*k+1]}")
        for k in range(4): A(f"v_add_f32 v{y[2*k]}, v{y[2*k]}, v{y[2*k+1]}")
        A(f"v_permlane16_swap_b32 v{y[0]}, v{y[2]}"); A(f"v_permlane16_swap_b32 v{y[4]}, v{y[6]}")
        A(f"v_add_f32 v{y[0]}, v{y[0]}, v{y[2]}"); A(f"v_add_f32 v{y[4]}, v{y[4]}, v{y[6]}")
        A(f"v_add_f32_dpp v{y[0]}, v{y[0]}, v{y[0]} row_ror:8 row_mask:0xf bank_mask:0x3")
        A(f"v_add_f32_dpp v{y[0]}, v{y[4]}, v{y[4]} row_ror:8 row_mask:0xf bank_mask:0xc")
    def srd(base, lo, hi, off, size):
        if off is None: A(f"s_mov_b32 s{base}, s{lo}"); A(f"s_mov_b32 s{base+1}, s{hi}")
        else: A(f"s_add_u32 s{base}, s{lo}, {off}"); A(f"s_addc_u32 s{base+1}, s{hi}, 0")
        A(f"s_mov_b32 s{base+2}, {size}"); A(f"s_mov_b32 s{base+3}, 0x20000")

    st = dict(issued=0, cons=0, ffn=False, since=0, nf=0); slot_of = {}
    free = list(range(NR)) + list(range(16, 16 + NX)); xq = []
    def pump():
        st["since"] += 1
        if st["issued"] < xs or not xq: return
        th_ = xe if st["nf"] else xe2 / 10
        if st["since"] < th_: return
        if len(xq) <= wl: return
        fn, mc, isf = xq[0]
        if (mc == "f" and st["ffn"]) or (mc != "f" and st["cons"] >= mc):
            xq.pop(0); fn(); st["since"] = min(st["since"] - th_, 0.9)
            if isf: st["nf"] -= 1
    def issue_kv():
        j = st["issued"]; jj = j % 64
        if jj % 4 == 0: A(f"s_mov_b32 s{sKVo}, {(jj//4)*32768}")
        s = free.pop(0); slot_of[j] = s
        a.vmem(f"buffer_load_dwordx4 {q4(sreg(s))}, v{vKV}, {sK if j < 64 else sV}, s{sKVo} offen offset:{(jj%4)*1024} {kvnt}", f"kv{j}")
        st["issued"] += 1
        pump()
        if wl and st["issued"] >= wl_at:
            assert len(xq) <= wl
            n_ = len(xq) if st["issued"] == 128 else min(len(xq), -(-wl // (129 - wl_at)))
            for _ in range(n_): xq.pop(0)[0]()
    tl = [0]
    def cwaitvm(tag, cond):
        i_ = len(a.vm) - 1 - a.vm[::-1].index(tag)
        if i_ > a.done:
            tl[0] += 1
            for c_ in cond: A(c_.replace("LBL", f"L_xt{tl[0]}"))
            A(f"s_waitcnt vmcnt({len(a.vm)-1-i_})"); A(f"L_xt{tl[0]}:")
    def topup(cons, lead):
        while st["issued"] < min(128, cons + lead) and free:
            if lead == W and st["issued"] == cons + lead - 1:
                if lc:
                    for wl_ in range(W - 1, min(lv) - 1, -1):
                        cwaitvm(f"kv{st['issued'] - wl_}", [f"s_cmp_gt_u32 s101, {wl_}", "s_cbranch_scc1 LBL"])
                elif xt and cons % xt[0] < xt[1]:
                    cwaitvm(f"kv{st['issued'] - WL}", ["s_cbranch_vccnz LBL"])
            issue_kv()
    CR = RING + 4 * 12
    def control(cons):
        if not lc: return
        if not st.get("cres") and 12 in free and cons >= B0 - 8:
            free.remove(12); st["cres"] = True
            A(f"v_mov_b32 v{CR+3}, {MODE}"); A(f"v_lshlrev_b32 v{CR+1}, 2, v{vL}") if lc == 2 else A(f"v_mov_b32 v{CR+1}, 0")
        if cons < c0 or cons > 112: return
        assert st["cres"]
        def only(w, code):
            tl[0] += 1
            A(f"s_cmp_lg_u32 s3, {w}"); A(f"s_cbranch_scc1 L_xt{tl[0]}")
            for x in code: A(x)
            A(f"L_xt{tl[0]}:")
        if lc == 2:
            if cons % pubi == 0:
                only((cons // pubi) % 8, [f"s_or_b32 s76, s6, {cons}", "s_mov_b64 exec, 1", f"v_mov_b32 v{CR+2}, s76",
                     f"buffer_store_dword v{CR+2}, v{vL}, {sWS}, s86 offen", "s_mov_b64 exec, -1"])
            if (cons - evd) % evi == 0 and cons - evd >= c0 + 4:
                only(st["pw"], [f"s_waitcnt vmcnt({a.mark() - st['pm']})", f"v_xor_b32 v{CR}, s6, v{CR}", "s_nop 1", f"v_readlane_b32 s76, v{CR}, s87",
                                "s_mov_b32 exec_hi, 0", "s_nop 1", f"v_cmp_gt_u32 s[78:79], s76, v{CR}", "s_mov_b32 exec_hi, -1",
                                "s_bcnt1_i32_b64 s76, s[78:79]", f"s_cmp_ge_u32 s76, {thr}", "s_cselect_b32 s76, s84, s85",
                                f"v_mov_b32 v{CR+2}, s76", f"ds_write_b32 v{CR+3}, v{CR+2}"])
            if cons % evi == 0 and cons >= c0 + 4 and cons + evd <= 112:
                st["pw"] = (3 * (cons // evi) + 5) % 8
                only(st["pw"], ["s_mov_b32 exec_hi, 0", f"buffer_load_dword v{CR}, v{CR+1}, {sWS}, s4 offen sc1", "s_mov_b32 exec_hi, -1"])
                st["pm"] = a.mark()
        else:
            if (cons - evd) % evi == 0 and cons - evd >= c0:
                only(st["pw"], [f"s_waitcnt vmcnt({a.mark() - st['pm']})", f"v_readfirstlane_b32 s76, v{CR}", "s_sub_u32 s76, s76, s6",
                                f"s_cmp_lt_i32 s76, {(st['k']-1)*32 + thr}", "s_cselect_b32 s76, s84, s85", f"v_mov_b32 v{CR+2}, s76", f"ds_write_b32 v{CR+3}, v{CR+2}"])
            if cons % evi == 0 and cons + evd <= 112:
                st["k"] = st.get("k", 0) + 1; st["pw"] = (3 * st["k"]) % 8
                only(st["pw"], ["s_mov_b64 exec, 1", f"v_mov_b32 v{CR}, 1", f"buffer_atomic_add v{CR}, v{CR+1}, {sWS}, s4 offen sc0 {afl}", "s_mov_b64 exec, -1"])
                st["pm"] = a.mark()
        if cons % rdi == 1 and cons > c0 + 2:
            A("s_waitcnt lgkmcnt(0)"); A(f"v_readfirstlane_b32 s101, v{vP}")
        if cons % rdi == 0: A(f"ds_read_b32 v{vP}, v{CR+3}")

    A(f"{KN}:")
    A("s_cmp_ge_u32 s2, 256"); A("s_cbranch_scc1 L_end")
    A("s_load_dwordx16 s[64:79], s[0:1], 0"); A("s_load_dwordx8 s[80:87], s[0:1], 64"); A("s_load_dwordx2 s[88:89], s[0:1], 96")
    if stamps: A("s_memrealtime s[92:93]")
    A("v_lshrrev_b32 v1, 6, v0"); A("v_and_b32 v0, 63, v0"); A("v_readfirstlane_b32 s3, v1")
    A(f"s_and_b32 s{sH}, s2, 15"); A(f"s_bfe_u32 s{sSP}, s2, 0x20004"); A(f"s_lshr_b32 s{sB}, s2, 6"); A(f"s_and_b32 s{sJ}, s2, 63")
    A(f"s_lshl_b32 s{sQo}, s{sB}, 4"); A(f"s_add_u32 s{sQo}, s{sQo}, s{sH}"); A(f"s_lshl_b32 s{sT0}, s{sQo}, 21")
    A(f"s_lshl_b32 s{sT1}, s{sSP}, 19"); A(f"s_add_u32 s{sT0}, s{sT0}, s{sT1}")
    l16, l8d, l8m, half, l32x16, l16m, g_, cbit = range(T, T + 8)
    vWQ = vS; XR = vY
    A(f"v_lshlrev_b32 v{l16}, 4, v{vL}")
    A(f"s_lshl_b32 s{sT1}, s3, 12"); A(f"v_add_u32 v{vKV}, s{sT1}, v{l16}")
    A(f"v_lshrrev_b32 v{l8d}, 3, v{vL}"); A(f"v_and_b32 v{l8m}, 7, v{vL}")
    A(f"v_lshlrev_b32 v{vWQ}, 13, v{l8d}"); A(f"v_lshl_add_u32 v{vWQ}, v{l8m}, 4, v{vWQ}")
    A(f"s_mul_i32 s{sWQo}, s3, {56*8192}")
    A(f"s_lshl_b32 s6, s{sH}, 9"); A(f"s_lshl_b32 s7, s{sSP}, 7"); A("s_add_u32 s6, s6, s7")
    if wqrow:
        A(f"v_lshrrev_b32 v{vWQ}, 5, v{vL}"); A(f"v_lshlrev_b32 v{vWQ}, 13, v{vWQ}"); A(f"v_and_b32 v{half}, 0x1f0, v{l16}"); A(f"v_add_u32 v{vWQ}, v{vWQ}, v{half}")
        A(f"s_mul_i32 s{sWQo}, s3, {14*8192}"); A(f"s_mul_i32 s7, s{sSP}, {112*8192}"); A(f"s_add_u32 s{sWQo}, s{sWQo}, s7"); A(f"s_lshl_b32 s6, s{sH}, 9")
    A(f"s_mul_i32 s{sT1}, s{sB}, 896")
    A("s_waitcnt lgkmcnt(0)")
    srd(8, 66, 67, f"s{sT0}", 1 << 19)
    for _ in range(kf): issue_kv()
    srd(32, 64, 65, f"s{sT1}", 896)
    a.vmem(f"buffer_load_dwordx4 {q4(XR)}, v{l16}, {sX}, 0 offen {wnt}", "xr")
    stamp()
    A("s_add_u32 s16, s70, s6"); A("s_addc_u32 s17, s71, 0"); A(f"s_sub_u32 s18, {448*8192}, s6"); A("s_mov_b32 s19, 0x20000")
    if noq: A("s_mov_b32 s18, 0")
    nq = [0]
    def iss_wq():
        u = nq[0]; nq[0] += 1
        a.vmem(f"buffer_load_dwordx4 {q4(WQR+4*u)}, v{vWQ}, {sWQ}, s{sWQo} offen {wnt}", f"wq{u}")
        if u < 6: A(f"s_add_u32 s{sWQo}, s{sWQo}, {8*8192}")
    for u in range(wq0): iss_wq()
    for _ in range(k2): issue_kv()
    def paced(upto):
        while st["issued"] < upto:
            a.need(f"kv{st['issued']-pace}")
            issue_kv()
            if nq[0] < 7 and (st["issued"] - kf - k2) % wqe == 0: iss_wq()
    stamp()
    def wrap7(reg, unit, base=None):
        pass
    def mk_w1(u):
        def f():
            A(f"s_mul_i32 s7, s{sU}, {512 if w1c else 8*3584}"); A(f"s_add_u32 s7, s7, s{sW1o}")
            a.vmem(f"buffer_load_dwordx2 v[{W1R+2*u}:{W1R+2*u+1}], v{vW1}, {sW1}, s7 offen {wnt}", f"w1{u}")
            A(f"s_add_u32 s{sU}, s{sU}, 1"); A(f"s_cmp_eq_u32 s{sU}, 7"); A(f"s_cselect_b32 s{sU}, 0, s{sU}")
        return f
    def mk_w2(i):
        def f(): a.vmem(f"buffer_load_dwordx4 {q4(W2R+4*i)}, v{vWX if i%2==0 else vWY}, {sW2}, s{sW2o} offen offset:{(i//2)*896} {wnt}", f"w2{i}")
        return f
    def mk_b1():
        A(f"s_lshl_b32 s7, s{sF}, 6")
        a.vmem(f"buffer_load_ushort v{vB1}, v{vB1}, {sB1}, s7 offen {wnt}", "b1")
    def mk_wo(i):
        def f():
            if sm and r16:
                sr_ = "s75" if i % 2 == 0 else "s93"
                if i % 4 < 2:
                    A(f"s_add_u32 {sr_}, s{sROT}, {2*(i//4) + i%2}"); A(f"s_and_b32 {sr_}, {sr_}, 15"); A(f"s_mul_i32 {sr_}, {sr_}, 896"); A(f"s_add_u32 {sr_}, {sr_}, s{sWOb}")
                a.vmem(f"buffer_load_dwordx4 {q4(RA+4*i)}, v{vWX if i%4<2 else vWY}, {sWO}, {sr_} offen {wont}", f"wo{i}")
                return
            if sm:
                if i % 4 == 0:
                    A(f"s_add_u32 s75, s{sROT}, {i//4}"); A("s_and_b32 s75, s75, 7"); A("s_mul_i32 s75, s75, 1792"); A(f"s_add_u32 s75, s75, s{sWOb}")
                a.vmem(f"buffer_load_dwordx4 {q4(RA+4*i)}, v{vWX if i%4<2 else vWY}, {sWO}, s75 offen offset:{(i%2)*896} {wont}", f"wo{i}")
                return
            if i % 2 == 0:
                A(f"s_add_u32 s75, s{sROT}, {i//2}"); A("s_and_b32 s75, s75, 15"); A("s_mul_i32 s75, s75, 896"); A(f"s_add_u32 s75, s75, s{sWOb}")
            a.vmem(f"buffer_load_dwordx4 {q4(RA+4*i)}, v{vWX if i%2==0 else vWY}, {sWO}, s75 offen {wont}", f"wo{i}")
        return f
    for fn in [mk_w1(u) for u in range(7)] + [mk_w2(i) for i in range(4)] + [mk_b1]:
        xq.append((fn, 0, True)); st["nf"] += 1
    for i in ([4 * (k // 4) + (0, 2, 1, 3)[k % 4] for k in range(32)] if so else range(32)):
        xq.append((mk_wo(i), "f" if i >= 24 else (i - 12 + 17 if 12 <= i < 12 + NX else 0), False))
    assert xs >= qd + qb + qb0
    A(f"v_mul_u32_u24 v{vW1}, 3584, v{l8d}"); A(f"v_lshl_add_u32 v{vW1}, v{l8m}, 3, v{vW1}")
    A(f"v_lshrrev_b32 v{half}, 5, v{vL}"); A(f"v_and_b32 v{l32x16}, 0x1f0, v{l16}")
    A(f"v_mul_u32_u24 v{vWX}, {16*896}, v{half}"); A(f"v_add_u32 v{vWX}, v{vWX}, v{l32x16}")
    A(f"v_add_u32 v{vWY}, 512, v{vWX}"); A(f"v_cmp_gt_u32 vcc, {24*16}, v{l32x16}"); A(f"v_mov_b32 v{g_}, 0x80000000")
    A(f"v_cndmask_b32 v{vWY}, v{g_}, v{vWY}, vcc")
    A(f"v_and_b32 v{g_}, 1, v{vL}"); A(f"v_lshl_add_u32 v{g_}, v{half}, 4, v{g_}"); A(f"s_lshl_b32 s{sT1}, s3, 1"); A(f"v_add_u32 v{vPR}, s{sT1}, v{g_}")
    A(f"v_lshlrev_b32 v{vB1}, 1, v{vPR}")
    A(f"s_mul_i32 s{sW1o}, s3, {56*3584}"); A(f"s_mul_i32 s{sW2o}, s3, {2*896}"); A(f"s_mul_i32 s{sWOb}, s3, {32*896}")
    if rot: A(f"s_lshr_b32 s{sROT}, s2, 4"); A(f"s_lshl_b32 s{sU}, s{sB}, 1")
    else: A(f"s_mov_b32 s{sROT}, 0"); A(f"s_mov_b32 s{sU}, 0")
    A(f"s_and_b32 s{sF}, s{sJ}, 0x30"); A(f"s_and_b32 s7, s{sJ}, 7"); A("s_lshl_b32 s7, s7, 1"); A(f"s_add_u32 s{sF}, s{sF}, s7")
    A(f"s_bfe_u32 s7, s{sJ}, 0x10003"); A(f"s_add_u32 s{sF}, s{sF}, s7")
    if fm:
        A(f"s_and_b32 s6, s{sJ}, 7"); A("s_add_u32 s6, s6, s7"); A("s_add_u32 s6, s6, 47")
        A(f"s_bitcmp1_b32 s{sJ}, 0"); A("s_cselect_b32 s6, s6, 56")
        A(f"s_cmp_lt_u32 s{sJ}, 48"); A(f"s_cselect_b32 s{sF}, s{sF}, s6")
    else:
        A(f"s_cmp_lt_u32 s{sJ}, 48"); A(f"s_cselect_b32 s{sF}, s{sF}, s{sJ}")
    if fm in (3, 4, 5):
        A(f"s_lshr_b32 s6, s{sJ}, 4"); A(f"s_and_b32 s7, s{sJ}, 7")
        if fm == 5:
            A("s_mul_i32 s7, s7, 3"); A("s_add_u32 s7, s7, s6")
        else:
            A(f"s_mul_i32 s75, s6, {3 if fm == 3 else 1}"); A("s_add_u32 s7, s7, s75"); A("s_and_b32 s7, s7, 7"); A("s_lshl_b32 s6, s6, 3"); A("s_add_u32 s7, s7, s6")
        A("s_lshl_b32 s7, s7, 1"); A(f"s_bfe_u32 s6, s{sJ}, 0x10003"); A("s_add_u32 s7, s7, s6")
        A(f"s_cmp_lt_u32 s{sJ}, 48"); A(f"s_cselect_b32 s{sF}, s7, s{sF}")
    if fm == 2:
        A(f"s_bfe_u32 s6, s{sJ}, 0x20001"); A("s_mul_i32 s6, s6, 14"); A(f"s_lshr_b32 s7, s{sJ}, 3"); A("s_add_u32 s6, s6, s7")
        A(f"s_add_u32 s{sF}, s6, 6"); A("s_cmp_lt_u32 s7, 6"); A("s_cselect_b32 s6, s6, 56")
        A(f"s_bitcmp1_b32 s{sJ}, 0"); A(f"s_cselect_b32 s{sF}, s{sF}, s6")
    A(f"s_lshl_b32 s7, s{sF}, 6"); A("s_add_u32 s24, s76, s7"); A("s_addc_u32 s25, s77, 0")
    A(f"s_sub_u32 s26, {448*3584}, s7"); A("s_mov_b32 s27, 0x20000")
    A(f"s_mul_i32 s{sT1}, s{sF}, {32*896}"); srd(28, 80, 81, f"s{sT1}", 32 * 896)
    A(f"s_cmp_lt_u32 s{sF}, 56"); A("s_cselect_b32 s26, s26, 0"); A("s_cselect_b32 s30, s30, 0")
    A(f"s_cmp_lt_u32 s{sJ}, 56"); A(f"s_cselect_b32 s{sRED}, 1, 0"); A("s_cmp_eq_u32 s3, 7"); A(f"s_cselect_b32 s{sRED}, s{sRED}, 0")
    if w1c:
        A("s_mov_b32 s24, s76"); A("s_mov_b32 s25, s77"); A(f"v_lshlrev_b32 v{vW1}, 3, v{vL}"); A(f"s_mul_i32 s{sW1o}, s{sF}, 28672"); A("s_mul_i32 s7, s3, 3584"); A(f"s_add_u32 s{sW1o}, s{sW1o}, s7")
    if nof in (1, 2): A("s_mov_b32 s26, 0")
    if nof in (1, 3): A("s_mov_b32 s30, 0")
    if nof in (1, 4): pass
    srd(36, 78, 79, None, 3584)
    A(f"s_lshl_b32 s{sT1}, s{sB}, 8"); A(f"s_load_dword s{sTAG}, s[88:89], s{sT1}")
    sTAG0 = 87
    if lc == 2: A("s_load_dword s87, s[88:89], 0")
    if lc:
        A("s_getreg_b32 s101, hwreg(HW_REG_XCC_ID)"); A("s_and_b32 s101, s101, 7"); A("s_lshl_b32 s4, s101, 8"); A(f"s_add_u32 s4, s4, {PREG}")
        if lc == 1: A("s_load_dword s6, s[88:89], s4")
    srd(12, 68, 69, f"s{sT0}", 1 << 19)
    A(f"s_mul_i32 s{sT1}, s{sH}, {256*896}"); srd(20, 72, 73, f"s{sT1}", 0 if nowo else 256 * 896)
    srd(40, 82, 83, None, 896); srd(44, 88, 89, None, 2 << 20); srd(48, 84, 85, None, 3584)
    if pt:
        A("s_mov_b64 exec, 1")
        a.vmem(f"buffer_load_dword v{vS+1}, v{vKV}, {sV}, 0 offen nt", "pv")
        if pt >= 2:
            for k_, (srd_, so_) in enumerate([(sWS, f"s{sKVo}"), (sW1, f"s{sW1o}"), (sW2, "0"), (sWO, f"s{sWOb}"), (sB1, "0"), (sB2, "0"), (sOUT, "0")]):
                a.vmem(f"buffer_load_dword v{RING+56+k_}, v{vL}, {srd_}, {so_} offen", f"pt{k_}")
        A("s_mov_b64 exec, -1")
    if False:
        for r in list(range(RA + 28, RA + 48)) + list(range(RA + 48 + 4 * NX, W1R)) + [W1R + 14, W1R + 15]: A(f"v_mov_b32 v{r}, 0")
    A(f"v_mul_u32_u24 v{vST}, {3072 if (rl and not hy) else 48}, v{l8d}"); A(f"v_mul_u32_u24 v{vSC}, 11, v{l8m}"); A(f"v_lshrrev_b32 v{vSC}, 5, v{vSC}")
    A(f"v_lshl_add_u32 v{vST}, v{vSC}, 4, v{vST}")
    A(f"v_lshrrev_b32 v{g_}, 4, v{vL}"); A(f"v_xor_b32 v{vZ}, v{g_}, v{l8d}"); A(f"v_and_b32 v{vZ}, 1, v{vZ}")
    A(f"v_lshlrev_b32 v{vZ}, 2, v{vZ}"); A(f"v_lshrrev_b32 v{vP}, 1, v{l8m}"); A(f"v_add_u32 v{vZ}, v{vZ}, v{vP}")
    A(f"v_and_b32 v{vP}, 1, v{vL}"); A(f"v_lshlrev_b32 v{vP}, 4, v{vP}"); A(f"v_mov_b32 v{vG}, 0xffff"); A(f"v_lshlrev_b32 v{vP}, v{vP}, v{vG}")
    for r in range(4):
        A(f"v_cmp_eq_u32 vcc, {r}, v{vZ}"); A(f"v_cndmask_b32 v{vM+r}, 0, v{vP}, vcc")
    A(f"v_and_b32 v{l16m}, 15, v{vL}"); A(f"v_and_b32 v{g_}, 1, v{g_}")
    A(f"v_lshlrev_b32 v{vOA}, 9, v{half}"); A(f"v_lshl_add_u32 v{vOA}, v{l16m}, 5, v{vOA}"); A(f"v_lshl_add_u32 v{vOA}, v{g_}, 4, v{vOA}")
    A(f"s_mul_i32 s{sT1}, s3, {PSTR}"); A(f"v_add_u32 v{vPW}, s{sT1}, v{vOA}")
    A(f"s_lshl_b32 s{sT1}, s3, 11"); A(f"v_add_u32 v{vOA}, s{sT1}, v{vOA}")
    A(f"v_lshlrev_b32 v{vG}, 9, v{g_}"); A(f"v_lshl_add_u32 v{vPR}, v{vPR}, 2, v{vG}")
    A(f"v_mul_u32_u24 v{vG}, {4*PSTR}, v{g_}")
    if sm:
        if r16:
            A(f"v_lshl_add_u32 v{vXF}, v{l16m}, 1, v{half}"); A(f"v_add_u32 v{vXF}, s{sROT}, v{vXF}"); A(f"v_and_b32 v{vXF}, 15, v{vXF}")
        else:
            A(f"v_add_u32 v{vXF}, s{sROT}, v{l16m}"); A(f"v_and_b32 v{vXF}, 7, v{vXF}"); A(f"v_lshl_add_u32 v{vXF}, v{vXF}, 1, v{half}")
        A(f"v_lshl_add_u32 v{vXF}, v{g_}, 4, v{vXF}"); A(f"s_lshl_b32 s{sT1}, s3, 5"); A(f"v_add_u32 v{vXF}, s{sT1}, v{vXF}")
        A(f"v_and_b32 v{vG}, 1, v{l8d}"); A(f"v_mul_u32_u24 v{vG}, {4*PSTR}, v{vG}"); A(f"v_lshl_add_u32 v{vXF}, v{vXF}, 2, v{vG}")
    else:
        A(f"v_add_u32 v{vXF}, s{sROT}, v{l16m}"); A(f"v_and_b32 v{vXF}, 15, v{vXF}")
        A(f"v_lshl_add_u32 v{vXF}, v{half}, 4, v{vXF}"); A(f"s_lshl_b32 s{sT1}, s3, 5"); A(f"v_add_u32 v{vXF}, s{sT1}, v{vXF}"); A(f"v_lshl_add_u32 v{vXF}, v{vXF}, 2, v{vG}")
    A(f"v_lshlrev_b32 v{vPA}, 4, v{g_}")
    A(f"v_lshlrev_b32 v{vYR}, 2, v{vL}"); A(f"s_lshl_b32 s{sT1}, s3, 8"); A(f"v_add_u32 v{vYR}, s{sT1}, v{vYR}")
    A(f"v_lshl_add_u32 v{cbit}, v{g_}, 1, v{half}"); A(f"v_and_b32 v{vB2}, 1, v{l8d}"); A(f"v_lshl_add_u32 v{cbit}, v{vB2}, 2, v{cbit}")
    A(f"v_mov_b32 v{vB2}, v{cbit}")
    A(f"v_and_b32 v{vG}, 3, v{cbit}"); A(f"v_lshl_add_u32 v{vG}, v{l8m}, 2, v{vG}")
    A(f"s_lshl_b32 s{sT1}, s3, 7"); A(f"v_lshl_add_u32 v{vG}, v{vG}, 2, s{sT1}")
    A("s_mov_b32 s66, 0xcccccccc"); A("s_mov_b32 s67, 0xcccccccc"); A("s_mov_b32 s68, 0xaaaaaaaa"); A("s_mov_b32 s69, 0xaaaaaaaa")
    A("s_mov_b32 s70, 0x40404040"); A("s_mov_b32 s71, 0x40404040"); A("s_mov_b32 s64, 0x49494949"); A("s_mov_b32 s65, 0x49494949")
    A(f"s_mov_b32 s{sC}, {f2u(LOG2E/16):#x}")
    A(f"s_lshl_b32 s{sQo}, s{sQo}, 10"); A(f"s_add_u32 s{sQo}, s{sQo}, {QREG}")
    A(f"s_mul_i32 s{sDST}, s{sB}, {RB}"); A(f"s_mul_i32 s{sT1}, s{sJ}, {48 if (rl and not hy) else REC}"); A(f"s_add_u32 s{sDST}, s{sDST}, s{sT1}")
    A(f"s_mul_i32 s{sT1}, s3, {8*3072 if (rl and not hy) else 384}"); A(f"s_add_u32 s{sDST}, s{sDST}, s{sT1}"); A(f"s_add_u32 s{sDST}, s{sDST}, {FREG}")
    A("s_cmp_eq_u32 s3, 7"); A(f"s_cselect_b32 s{sDST}, 0x70000000, s{sDST}")
    E = vA0; D_ = vO
    a.need("xr")
    for r in range(4):
        A(f"v_lshlrev_b32 v{E+2*r}, 16, v{XR+r}"); A(f"v_and_b32 v{E+2*r+1}, 0xffff0000, v{XR+r}")
    m, v2, t = QG, QG + 1, QG + 2
    A(f"v_add_f32 v{m}, v{E}, v{E+1}"); A(f"v_add_f32 v{v2}, v{E+2}, v{E+3}"); A(f"v_add_f32 v{t}, v{E+4}, v{E+5}"); A(f"v_add_f32 v{t+1}, v{E+6}, v{E+7}")
    A(f"v_add_f32 v{m}, v{m}, v{v2}"); A(f"v_add_f32 v{t}, v{t}, v{t+1}"); A(f"v_add_f32 v{m}, v{m}, v{t}")
    rowall("v_add_f32", m); xrow("v_add_f32", m, t, 16); xrow("v_add_f32", m, t, 32)
    A(f"v_mul_f32 v{m}, {f2u(1/448):#x}, v{m}")
    A(f"v_mov_b32 v{v2}, 0"); A(f"v_mov_b32 v{t+1}, 0")
    A("s_mov_b32 exec_hi, 0x00ffffff")
    for r in range(8): A(f"v_sub_f32 v{D_+r}, v{E+r}, v{m}")
    for r in range(8): A(f"v_fmac_f32 v{v2 if r%2==0 else t+1}, v{D_+r}, v{D_+r}")
    A("s_mov_b32 exec_hi, -1")
    A(f"v_add_f32 v{v2}, v{v2}, v{t+1}")
    rnd(m); rowall("v_add_f32", v2)
    for r in range(8): A(f"v_sub_f32 v{E+r}, v{E+r}, v{m}")
    xrow("v_add_f32", v2, t, 16)
    for r in range(4): A(f"v_cvt_pk_bf16_f32 v{XR+r}, v{E+2*r}, v{E+2*r+1}")
    xrow("v_add_f32", v2, t, 32)
    for r in range(4):
        A(f"v_lshlrev_b32 v{E+2*r}, 16, v{XR+r}"); A(f"v_and_b32 v{E+2*r+1}, 0xffff0000, v{XR+r}")
    A(f"v_mul_f32 v{v2}, {f2u(1/448):#x}, v{v2}")
    rnd(v2); A(f"v_add_f32 v{v2}, {f2u(1e-5):#x}, v{v2}"); rnd(v2); A(f"v_sqrt_f32 v{v2}, v{v2}"); rnd(v2)
    A(f"v_rcp_f32 v{t}, v{v2}")
    for r in range(8): A(f"v_mul_f32 v{D_+r}, v{E+r}, v{t}")
    for r in range(8): A(f"v_fma_f32 v{E+r}, -v{D_+r}, v{v2}, v{E+r}")
    for r in range(8): A(f"v_fmac_f32 v{D_+r}, v{E+r}, v{t}")
    for r in range(4): A(f"v_cvt_pk_bf16_f32 v{XR+r}, v{D_+2*r}, v{D_+2*r+1}")
    A(f"ds_write_b128 v{l16}, {q4(XR)} offset:{XN}")
    vXA = vSC
    A(f"s_mul_i32 s{sT1}, s3, 112"); A(f"v_lshl_add_u32 v{vXA}, v{l8d}, 1, s{sT1}")
    A("s_waitcnt lgkmcnt(0)")
    U = vA0
    for u in range(7): A(f"ds_read_u16 v{U+u}, v{vXA} offset:{XN+16*u}")
    A(f"s_mul_i32 s{sTAG}, s{sTAG}, 0x9E3779B1"); A(f"s_add_u32 s{sTAG}, s{sTAG}, 0x7F4A7C15")
    if lc == 2: A("s_mul_i32 s87, s87, 0x9E3779B1"); A("s_add_u32 s87, s87, 0x7F4A7C15")
    QA = vO
    for r in range(8): A(f"v_mov_b32 v{QA+r}, 0")
    A(f"v_lshl_add_u32 v{vRD}, v{l8m}, 3, v{cbit}"); A(f"s_lshl_b32 s{sT1}, s3, 8"); A(f"v_lshl_add_u32 v{vRD}, v{vRD}, 2, s{sT1}")
    A("s_waitcnt lgkmcnt(0)")
    stamp()
    for _ in range(wq1): iss_wq()
    paced(qd); assert nq[0] == 7
    for _ in range(qb0): issue_kv()
    HI = [vY, vY + 1]
    for u in range(7):
        hi = HI[u % 2]
        A(f"v_lshlrev_b32 v{hi}, 16, v{U+u}")
        a.need(f"wq{u}")
        for r in range(4): A(f"v_dot2c_f32_bf16 v{QA+2*r}, v{WQR+4*u+r}, v{U+u}")
        for r in range(4): A(f"v_dot2c_f32_bf16 v{QA+2*r+1}, v{WQR+4*u+r}, v{hi}")
    tree8(list(range(QA, QA + 8)))
    A(f"ds_write_b32 v{vRD}, v{QA} offset:{QP}")
    A(f"v_mov_b32 v{QA+2}, 0"); A(f"v_mov_b32 v{QA+3}, 0"); A(f"ds_write_b64 v{QA+2}, v[{QA+2}:{QA+3}] offset:{CN}"); A(f"ds_write_b32 v{QA+2}, v{QA+3} offset:{CN+8}")
    if lc: A(f"v_mov_b32 v{QA+4}, 4"); A(f"ds_write_b32 v{QA+2}, v{QA+4} offset:{MODE}")
    for _ in range(qb): issue_kv()
    A("s_waitcnt lgkmcnt(0)"); A("s_barrier")
    A("s_cmp_lg_u32 s3, 0"); A("s_cbranch_scc1 L_nopub")
    for k in range(8): A(f"ds_read_b32 v{QG+k}, v{vYR} offset:{QP+256*k}")
    A(f"v_mov_b32 v{vY+1}, s{sTAG}"); A(f"v_mov_b32 v{vY+3}, s{sTAG}")
    A(f"s_lshl_b32 s{sT1}, s{sSP}, 8"); A(f"s_add_u32 s{sT1}, s{sT1}, s{sQo}")
    A("s_waitcnt lgkmcnt(0)")
    for k in range(4): A(f"v_add_f32 v{QG+k}, v{QG+k}, v{QG+4+k}")
    A(f"v_add_f32 v{QG}, v{QG}, v{QG+1}"); A(f"v_add_f32 v{QG+2}, v{QG+2}, v{QG+3}"); A(f"v_add_f32 v{QG}, v{QG}, v{QG+2}")
    A(f"v_mov_b32_dpp v{QG+1}, v{QG} row_shl:1 {DP}"); A(f"v_cvt_pk_bf16_f32 v{vY}, v{QG}, v{QG+1}")
    A(f"v_mov_b32_dpp v{vY+2}, v{vY} row_shl:2 {DP}")
    A("s_mov_b32 exec_lo, 0x11111111"); A("s_mov_b32 exec_hi, 0x11111111")
    A(f"buffer_store_dwordx4 {q4(vY)}, v{vYR}, {sWS}, s{sT1} offen sc1")
    A("s_mov_b64 exec, -1"); A("s_nop 1")
    A("L_nopub:")
    stamp()
    A(f"v_lshlrev_b32 v{vRD}, 1, v{l32x16}")
    def poll_issue():
        a.vmem(f"buffer_load_dwordx4 {q4(QG)}, v{vRD}, {sWS}, s{sQo} offen sc1", "qg0")
        a.vmem(f"buffer_load_dwordx4 {q4(QG+4)}, v{vRD}, {sWS}, s{sQo} offen offset:16 sc1", "qg1")
    if qw:
        def qcheck():
            A(f"s_mov_b32 s{sCNT}, 0")
            A("L_qchk:")
            A(f"v_cmp_eq_u32 s[76:77], s{sTAG}, v{QG+1}"); A(f"v_cmp_eq_u32 s[78:79], s{sTAG}, v{QG+3}")
            A(f"v_cmp_eq_u32 s[80:81], s{sTAG}, v{QG+5}"); A(f"v_cmp_eq_u32 vcc, s{sTAG}, v{QG+7}")
            A("s_and_b64 s[76:77], s[76:77], s[78:79]"); A("s_and_b64 vcc, vcc, s[80:81]"); A("s_and_b64 vcc, vcc, s[76:77]")
            A("s_cmp_eq_u64 vcc, -1"); A("s_cbranch_scc1 L_qgot")
            A(f"s_add_u32 s{sCNT}, s{sCNT}, 1"); A(f"s_cmp_gt_u32 s{sCNT}, 0x400000"); A("s_cbranch_scc1 L_qgot")
            A(f"buffer_load_dwordx4 {q4(QG)}, v{vRD}, {sWS}, s{sQo} offen sc1"); A(f"buffer_load_dwordx4 {q4(QG+4)}, v{vRD}, {sWS}, s{sQo} offen offset:16 sc1")
            A("s_waitcnt vmcnt(0)"); A("s_branch L_qchk")
            A("L_qgot:")
            A(f"v_mov_b32 v{QG+1}, v{QG+2}"); A(f"v_mov_b32 v{QG+2}, v{QG+4}"); A(f"v_mov_b32 v{QG+3}, v{QG+6}")
            A(f"ds_write_b128 v{l32x16}, {q4(QG)} offset:{QB+1024}")
            A(f"v_mov_b32 v{QG+4}, 0"); A(f"v_mov_b32 v{QG+5}, 8"); A(f"ds_write_b32 v{QG+4}, v{QG+5} offset:{CN+8}")
        while st["issued"] < B0:
            if st["issued"] == qp_at:
                A("s_cmp_lg_u32 s3, 1"); A("s_cbranch_scc1 L_qp1")
                A(f"buffer_load_dwordx4 {q4(QG)}, v{vRD}, {sWS}, s{sQo} offen sc1"); A(f"buffer_load_dwordx4 {q4(QG+4)}, v{vRD}, {sWS}, s{sQo} offen offset:16 sc1")
                A("L_qp1:"); qm = a.mark()
            if st["issued"] == qp_at + qp_d:
                A("s_cmp_lg_u32 s3, 1"); A("s_cbranch_scc1 L_qp2")
                A(f"s_waitcnt vmcnt({a.mark()-qm})"); qcheck()
                A("L_qp2:")
            a.need(f"kv{st['issued']-pace}")
            issue_kv()
        A(f"v_mov_b32 v{QG+6}, 0")
        A("L_qw:"); A(f"ds_read_b32 v{QG+7}, v{QG+6} offset:{CN+8}"); A("s_waitcnt lgkmcnt(0)"); A(f"v_readfirstlane_b32 s76, v{QG+7}")
        A("s_cmp_lt_u32 s76, 8"); A("s_cbranch_scc1 L_qw")
        A(f"ds_read_b128 {q4(QG)}, v{l32x16} offset:{QB+1024}"); A("s_waitcnt lgkmcnt(0)")
    else:
        polled = False
        while st["issued"] < B0:
            if B0 - st["issued"] == pollk: poll_issue(); polled = True
            a.need(f"kv{st['issued']-pace}")
            issue_kv()
        if not polled: poll_issue()
        a.need("qg1")
        A(f"s_mov_b32 s{sCNT}, 0")
        A("L_qchk:")
        A(f"v_cmp_eq_u32 s[76:77], s{sTAG}, v{QG+1}"); A(f"v_cmp_eq_u32 s[78:79], s{sTAG}, v{QG+3}")
        A(f"v_cmp_eq_u32 s[80:81], s{sTAG}, v{QG+5}"); A(f"v_cmp_eq_u32 vcc, s{sTAG}, v{QG+7}")
        A("s_and_b64 s[76:77], s[76:77], s[78:79]"); A("s_and_b64 vcc, vcc, s[80:81]"); A("s_and_b64 vcc, vcc, s[76:77]")
        A("s_cmp_eq_u64 vcc, -1"); A("s_cbranch_scc1 L_qok")
        A(f"s_add_u32 s{sCNT}, s{sCNT}, 1"); A(f"s_cmp_gt_u32 s{sCNT}, 0x400000"); A("s_cbranch_scc1 L_qok")
        A("s_sleep 2")
        A(f"buffer_load_dwordx4 {q4(QG)}, v{vRD}, {sWS}, s{sQo} offen sc1"); A(f"buffer_load_dwordx4 {q4(QG+4)}, v{vRD}, {sWS}, s{sQo} offen offset:16 sc1")
        A("s_waitcnt vmcnt(0)"); A("s_branch L_qchk")
    A("L_qok:")
    if lc:
        A("s_bitcmp1_b32 s101, 0"); A(f"s_cselect_b32 s84, {lv[2]}, {lv[0]}"); A(f"s_cselect_b32 s85, {lv[3]}, {lv[1]}"); A(f"s_mov_b32 s101, 4")
        if lc == 2:
            A(f"s_and_b32 s6, s{sTAG0}, 0xffffff80"); A("s_lshr_b32 s87, s2, 3"); A("s_lshl_b32 s86, s87, 2"); A("s_add_u32 s86, s86, s4")
    if xt: A("s_getreg_b32 s76, hwreg(HW_REG_XCC_ID)"); A("s_bitcmp1_b32 s76, 0"); A("s_cselect_b64 vcc, -1, 0")
    stamp()
    vQ = [QG, QG + 1, QG + 2, QG + 3] if qw else [QG, QG + 2, QG + 4, QG + 6]
    def ffn():
        FA = vO
        for u in range(7):
            A(f"s_lshl_b32 s7, s{sU}, 4"); A(f"v_add_u32 v{vX}, s7, v{vXA}"); A(f"ds_read_u16 v{U+u}, v{vX} offset:{XN}")
            A(f"s_add_u32 s{sU}, s{sU}, 1"); A(f"s_cmp_eq_u32 s{sU}, 7"); A(f"s_cselect_b32 s{sU}, 0, s{sU}")
        for r in range(4): A(f"v_mov_b32 v{FA+r}, 0")
        a.need("w16")
        A("s_waitcnt lgkmcnt(0)")
        for u in range(7):
            hi = HI[u % 2]
            A(f"v_lshlrev_b32 v{hi}, 16, v{U+u}")
            A(f"v_dot2c_f32_bf16 v{FA}, v{W1R+2*u}, v{U+u}"); A(f"v_dot2c_f32_bf16 v{FA+2}, v{W1R+2*u+1}, v{U+u}")
            A(f"v_dot2c_f32_bf16 v{FA+1}, v{W1R+2*u}, v{hi}"); A(f"v_dot2c_f32_bf16 v{FA+3}, v{W1R+2*u+1}, v{hi}")
        A(f"v_permlane32_swap_b32 v{FA}, v{FA+1}"); A(f"v_permlane32_swap_b32 v{FA+2}, v{FA+3}")
        A(f"v_add_f32 v{FA}, v{FA}, v{FA+1}"); A(f"v_add_f32 v{FA+2}, v{FA+2}, v{FA+3}")
        A(f"v_permlane16_swap_b32 v{FA}, v{FA+2}"); A(f"v_add_f32 v{FA}, v{FA}, v{FA+2}")
        A(f"v_add_f32_dpp v{FA}, v{FA}, v{FA} row_ror:8 {DP}")
        A(f"ds_write_b32 v{vG}, v{FA} offset:{HP}")
        A(f"v_mov_b32 v{vY}, 0"); A(f"v_mov_b32 v{vY+1}, 1"); A("s_mov_b64 exec, 1"); A(f"ds_add_u32 v{vY}, v{vY+1} offset:{CN}"); A("s_mov_b64 exec, -1")
    nl = [0]
    def cwait(off, tmp):
        nl[0] += 1
        A(f"v_mov_b32 v{tmp}, 0")
        A(f"L_cw{nl[0]}:"); A(f"ds_read_b32 v{tmp+1}, v{tmp} offset:{off}"); A("s_waitcnt lgkmcnt(0)"); A(f"v_readfirstlane_b32 s76, v{tmp+1}")
        A("s_cmp_lt_u32 s76, 8"); A(f"s_cbranch_scc1 L_cw{nl[0]}")
    def ffn2():
        cwait(CN, T + 4)
        for k in range(4): A(f"ds_read_b32 v{T+k}, v{vPR} offset:{HP+k*128}")
        a.need("b1")
        A(f"v_lshlrev_b32 v{vB1}, 16, v{vB1}")
        A("s_waitcnt lgkmcnt(0)")
        A(f"v_add_f32 v{T}, v{T}, v{T+1}"); A(f"v_add_f32 v{T+2}, v{T+2}, v{T+3}"); A(f"v_add_f32 v{T}, v{T}, v{T+2}")
        xrow("v_add_f32", T, T + 1, 16)
        rnd(T); A(f"v_add_f32 v{T}, v{T}, v{vB1}"); rnd(T); A(f"v_max_f32 v{T}, 0, v{T}"); A(f"v_mul_f32 v{T}, v{T}, v{T}")
        A(f"v_cvt_pk_bf16_f32 v{vP}, v{T}, v{T}")
        amat(T, vP, 0); mfma(vX, T, W2R, True); mfma(vY, T, W2R + 4, True)
        amat(T + 4, vP, 1); mfma(vX, T + 4, W2R + 8); mfma(vY, T + 4, W2R + 12)
        A(f"ds_write_b128 v{vOA}, {q4(vX)} offset:{YP}"); A(f"ds_write_b128 v{vOA}, {q4(vY)} offset:{YP+1024}")
        A(f"v_mov_b32 v{T}, 0"); A(f"v_mov_b32 v{T+1}, 1"); A("s_mov_b64 exec, 1"); A(f"ds_add_u32 v{T}, v{T+1} offset:{CN+4}"); A("s_mov_b64 exec, -1")
        A(f"v_mov_b32 v{vPR}, v{vXF}")
        st["ffn"] = True
    def ffn3():
        cwait(CN + 4, T + 4)
        A(f"ds_read_b128 {q4(vX)}, v{vPA} offset:{MX}"); A(f"ds_read_b128 {q4(vY)}, v{vPA} offset:{LS}")
        A("s_waitcnt lgkmcnt(0)")
        A(f"v_max3_f32 v{vZ}, v{vX}, v{vX+1}, v{vX+2}"); A(f"v_max_f32 v{vZ}, v{vZ}, v{vX+3}")
        xrow("v_max_f32", vZ, T + 4, 16)
        for k in range(4): A(f"v_sub_f32 v{vX+k}, v{vX+k}, v{vZ}")
        A(f"v_sub_f32 v{vSC}, v{vSC}, v{vZ}")
        for k in range(4): A(f"v_exp_f32 v{vX+k}, v{vX+k}")
        A(f"v_exp_f32 v{vSC}, v{vSC}")
        A(f"v_mul_f32 v{T}, v{vY}, v{vX}")
        for k in range(1, 4): A(f"v_fmac_f32 v{T}, v{vY+k}, v{vX+k}")
        xrow("v_add_f32", T, T + 4, 16)
        A(f"v_log_f32 v{T+4}, v{T}"); A(f"v_rcp_f32 v{T}, v{T}")
        A(f"v_add_f32 v{vZ}, v{vZ}, v{T+4}"); A(f"v_mul_f32 v{vSC}, v{vSC}, v{T}")
        A(f"s_call_b64 {sRET}, L_pub"); A("s_nop 1"); a.vm.append("fst")
        if sm:
            for r in range(8): A(f"v_mov_b32 v{QG+r}, 0")
            for r in range(8): A(f"v_mov_b32 v{vX+r}, 0")
            A(f"v_and_b32 v{vB1}, 3, v{vL}"); A(f"v_mul_u32_u24 v{vB1}, 0x5555, v{vB1}")
        if hy:
            YS, YB = (64, 4096) if y64 else (48, 3072)
            A(f"v_lshrrev_b32 v{T+4}, 3, v{vL}"); A(f"v_mul_u32_u24 v{T+4}, {YB-48}, v{T+4}"); A(f"v_add_u32 v{vST}, v{vST}, v{T+4}")
            if y64:
                A(f"v_add_u32 v{T+4}, 16, v{vST}"); A("s_mov_b32 s76, 0x80808080"); A("s_mov_b32 s77, 0x80808080"); A(f"v_cndmask_b32 v{vST}, v{vST}, v{T+4}, s[76:77]")
                A("s_mov_b32 s64, 0xc9c9c9c9"); A("s_mov_b32 s65, 0xc9c9c9c9")
            A(f"s_mul_i32 s{sDST}, s{sB}, {56*YB}"); A(f"s_mul_i32 s{sT1}, s{sJ}, {YS}"); A(f"s_add_u32 s{sDST}, s{sDST}, s{sT1}")
            A(f"s_mul_i32 s{sT1}, s3, {8*YB}"); A(f"s_add_u32 s{sDST}, s{sDST}, s{sT1}"); A(f"s_add_u32 s{sDST}, s{sDST}, {YREG}")
        else: A(f"s_add_u32 s{sDST}, s{sDST}, {YREG-FREG}")
    tA = T
    dp = lambda d, s, c, bm: A(f"v_add_f32_dpp v{d}, v{s}, v{s} {c} row_mask:0xf bank_mask:{bm}")
    for j in range(65):
        if j == fa: ffn(); stamp()
        if j == 64: break
        g, i = divmod(j, 16); pi = i // 2
        acc = tA + (pi & 1) * 2 + (i & 1)
        rr = sreg(slot_of[j])
        A(f"v_mov_b32 v{acc}, 0")
        a.need(f"kv{j}")
        for r in range(4): A(f"v_dot2c_f32_bf16 v{acc}, v{rr+r}, v{vQ[r]}")
        if slot_of[j] < 16: free.append(slot_of[j])
        st["cons"] = j + 1; control(j + 1)
        lead = WT if j + 1 in (fa, 64) else (WB if j + 1 in bars else WK)
        topup(j + 1, lead)
        if j + 1 in bk: issue_kv()
        if j + 1 in bars: A("s_barrier")
        if i & 1:
            a0, a1 = acc - 1, acc
            dp(a0, a0, "row_ror:8", "0x3"); dp(a0, a1, "row_ror:8", "0xc")
            if pi & 1:
                c = tA + 4 + ((pi >> 1) & 1)
                dp(c, tA, "row_half_mirror", "0x5"); dp(c, tA + 2, "row_half_mirror", "0xa")
                if pi & 2:
                    d = tA + 6 + (pi >> 2)
                    dp(tA + 4, tA + 4, "quad_perm:[2,3,0,1]", "0xf"); dp(tA + 5, tA + 5, "quad_perm:[2,3,0,1]", "0xf")
                    A(f"v_cndmask_b32 v{d}, v{tA+4}, v{tA+5}, {sMb1}")
                    if pi == 7:
                        dp(tA + 6, tA + 6, "quad_perm:[1,0,3,2]", "0xf"); dp(tA + 7, tA + 7, "quad_perm:[1,0,3,2]", "0xf")
                        A(f"v_cndmask_b32 v{vS+g}, v{tA+6}, v{tA+7}, {sMb0}")
                        xrow("v_add_f32", vS + g, tA + 6, 16); rnd(vS + g)
    stamp()
    mx = T
    A(f"v_max3_f32 v{mx}, v{vS}, v{vS+1}, v{vS+2}"); A(f"v_max_f32 v{mx}, v{mx}, v{vS+3}")
    rowall("v_max_f32", mx); xrow("v_max_f32", mx, T + 1, 32)
    A(f"v_mul_f32 v{mx}, s{sC}, v{mx}")
    for g in range(4): A(f"v_fma_f32 v{vS+g}, v{vS+g}, s{sC}, -v{mx}")
    for g in range(4): A(f"v_exp_f32 v{vS+g}, v{vS+g}")
    A(f"v_add_f32 v{T+2}, v{vS}, v{vS+1}"); A(f"v_add_f32 v{T+3}, v{vS+2}, v{vS+3}"); A(f"v_add_f32 v{T+2}, v{T+2}, v{T+3}")
    for g in range(4): A(f"v_cvt_pk_bf16_f32 v{vS+g}, v{vS+g}, v{vS+g}")
    rowall("v_add_f32", T + 2); xrow("v_add_f32", T + 2, T + 3, 32)
    A(f"s_lshl_b32 s{sT1}, s3, 2"); A(f"v_mov_b32 v{T+3}, s{sT1}")
    A(f"ds_write_b32 v{T+3}, v{mx} offset:{MX}"); A(f"ds_write_b32 v{T+3}, v{T+2} offset:{LS}")
    A(f"v_mov_b32 v{vSC}, v{mx}")
    assert st["nf"] == 0
    ffn2()
    GR = RING + 4 * 13
    brev = lambda i: ((i & 1) << 3) | ((i & 2) << 1) | ((i & 4) >> 1) | ((i & 8) >> 3)
    gres = False
    for j in range(64):
        am = vA0 if j % 2 == 0 else vA1
        amat(am, vS + j // 16, brev(j % 16))
        a.need(f"kv{64+j}")
        mfma(vO, am, sreg(slot_of[64 + j]), first=(j == 0))
        free.append(slot_of[64 + j])
        if not gres and all(s in free for s in (13, 14, 15)):
            for s in (13, 14, 15): free.remove(s)
            gres = True
        st["cons"] = 64 + j + 1; control(64 + j + 1); topup(64 + j + 1, WB if 64 + j + 1 in bars else (We if j >= Wf else W))
        if 64 + j + 1 in bars: A("s_barrier")
        if j == ra:
            assert gres
            A(f"s_mov_b32 s{sRDo}, 0x70000000")
            A(f"s_cmp_eq_u32 s{sRED}, 0"); A("s_cbranch_scc1 L_skip_ra")
            A(f"s_lshl_b32 s{sT1}, s{sJ}, 3"); A(f"v_add_u32 v{T}, s{sT1}, v{vB2}"); A(f"v_lshlrev_b32 v{vW1}, 1, v{T}")
            A(f"buffer_load_ushort v{vXF}, v{vW1}, {sX}, 0 offen"); A(f"buffer_load_ushort v{vB2}, v{vW1}, {sB2}, 0 offen")
            if pt: A(f"buffer_load_ushort v{T+1}, v{vW1}, {sOUT}, 0 offen")
            A(f"v_mul_u32_u24 v{vRD}, {48 if (rl and not hy) else REC}, v{vL}")
            A(f"s_mul_i32 s{sRDo}, s{sB}, {RB}"); A(f"s_mul_i32 s{sT1}, s{sJ}, {3072 if (rl and not hy) else 48}"); A(f"s_add_u32 s{sRDo}, s{sRDo}, s{sT1}"); A(f"s_add_u32 s{sRDo}, s{sRDo}, {FREG}")
            A(f"s_mul_i32 s{sT1}, s{sB}, 896"); A(f"v_add_u32 v{vW1}, s{sT1}, v{vW1}")
            A("L_skip_ra:")
        if st["issued"] == 128 and not st.get("f3"):
            assert not xq
            st["f3"] = True; ffn3()
    assert not xq, len(xq)
    stamp()
    if notail: A("s_waitcnt vmcnt(0)"); A("s_endpgm")
    def pload(base):
        for k in range(3): A(f"buffer_load_dwordx4 {q4(base+4*k)}, v{vRD}, {sWS}, s{sRDo} offen offset:{16*k} {lf}")
    pload(GR); a.vm += ["fp"] * 3
    for r in range(4): A(f"v_mul_f32 v{vO+r}, v{vO+r}, v{vSC}")
    A(f"ds_write_b128 v{vPW}, {q4(vO)} offset:{PART}")
    A("s_waitcnt lgkmcnt(0)")
    A("s_barrier")
    if stamps == 2: stamp()
    for k in range(4): A(f"ds_read_b32 v{T+k}, v{vPR} offset:{PART+k*PSTR}")
    A("s_waitcnt lgkmcnt(2)"); A(f"v_add_f32 v{T}, v{T}, v{T+1}")
    A("s_waitcnt lgkmcnt(0)"); A(f"v_add_f32 v{T+2}, v{T+2}, v{T+3}"); A(f"v_add_f32 v{T}, v{T}, v{T+2}")
    if sm:
        A(f"v_add_f32_dpp v{T}, v{T}, v{T} row_ror:8 {DP}")
        A(f"v_cvt_pk_bf16_f32 v{vP}, v{T}, 0")
        if stamps == 2: stamp()
        def smat(dst, t_):
            for r in range(4): A(f"v_mov_b32_dpp v{dst+r}, v{vP} row_newbcast:{t_} row_mask:0xf bank_mask:{1<<r:#x}")
        smat(QG, 0)
        for t_ in range(8):
            am = QG + 4 * (t_ % 2)
            if t_ < 7: smat(QG + 4 * ((t_ + 1) % 2), t_ + 1)
            a.need(f"wo{4*t_+3}")
            A(f"v_smfmac_f32_16x16x64_bf16 {q4(vX)}, {q4(am)}, v[{RA+16*t_}:{RA+16*t_+7}], v{vB1}")
            A(f"v_smfmac_f32_16x16x64_bf16 {q4(vY)}, {q4(am)}, v[{RA+16*t_+8}:{RA+16*t_+15}], v{vB1}")
    else:
        xrow("v_add_f32", T, T + 1, 16)
        A(f"v_cvt_pk_bf16_f32 v{vP}, v{T}, v{T}")
        if stamps == 2: stamp()
        amat(vA0, vP, 0)
        for t_ in range(16):
            am = vA0 if t_ % 2 == 0 else vA1
            if t_ < 15: amat(vA1 if t_ % 2 == 0 else vA0, vP, t_ + 1)
            a.need(f"wo{2*t_+1}")
            mfma(vX, am, RA + 8 * t_, first=(t_ == 0)); mfma(vY, am, RA + 8 * t_ + 4, first=(t_ == 0))
    if stamps == 2: stamp()
    A(f"ds_write_b128 v{vOA}, {q4(vX)} offset:{YP}"); A(f"ds_write_b128 v{vOA}, {q4(vY)} offset:{YP+1024}")
    A("s_waitcnt lgkmcnt(0)"); A("s_barrier")
    if stamps == 2: stamp()
    A("s_cmp_eq_u32 s3, 7"); A("s_cbranch_scc1 L_w7")
    A(f"s_call_b64 {sRET}, L_pub"); A("s_nop 1")
    A("L_w7:")
    stamp()
    if nored: A("s_endpgm")
    A(f"s_cmp_eq_u32 s{sRED}, 0"); A("s_cbranch_scc1 L_fin")
    G2 = RING
    vRY = vRD
    if hy:
        vRY = vKV
        A(f"v_mul_u32_u24 v{vRY}, {64 if y64 else 48}, v{vL}")
        A(f"s_mul_i32 s75, s{sB}, {56*4096 if y64 else RB}"); A(f"s_mul_i32 s{sT1}, s{sJ}, {4096 if y64 else 3072}"); A(f"s_add_u32 s75, s75, s{sT1}"); A(f"s_add_u32 s75, s75, {YREG}")
    else: A(f"s_add_u32 s75, s{sRDo}, {YREG-FREG}")
    def yload(k_):
        for k in range(3): A(f"buffer_load_dwordx4 {q4(RING+12*k_+4*k)}, v{vRY}, {sWS}, s75 offen offset:{16*k} {lf}")
    yload(0)
    vWt = vSC
    A(f"v_mov_b32 v{vWt}, 1.0")
    A("s_waitcnt vmcnt(3)")
    A(f"s_call_b64 {sRET}, L_red_check"); A("s_nop 1")
    u = GR; z, zm, tt = GR + 10, GR + 3, GR + 7
    A(f"v_mov_b32 v{zm}, v{z}"); xrow("v_max_f32", zm, tt, 16)
    rnd(u); A(f"v_lshlrev_b32 v{vB2}, 16, v{vB2}"); xrow("v_max_f32", zm, tt, 32)
    A(f"v_add_f32 v{u}, v{u}, v{vB2}"); rnd(u)
    A(f"v_sub_f32 v{z}, v{z}, v{zm}"); A(f"v_exp_f32 v{z}, v{z}")
    A(f"v_mul_f32 v{u+1}, {f2u(-LOG2E):#x}, v{u}"); A(f"v_exp_f32 v{u+1}, v{u+1}")
    A(f"v_mov_b32 v{zm}, v{z}"); xrow("v_add_f32", zm, tt, 16)
    A(f"v_add_f32 v{u+1}, 1.0, v{u+1}"); A(f"v_rcp_f32 v{u+1}, v{u+1}"); xrow("v_add_f32", zm, tt, 32)
    A(f"v_mul_f32 v{vG}, v{u}, v{u+1}"); rnd(vG); A(f"v_lshlrev_b32 v{vXF}, 16, v{vXF}")
    A(f"v_rcp_f32 v{zm}, v{zm}"); A(f"v_mul_f32 v{vWt}, v{z}, v{zm}")
    if NP == 1:
        A(f"s_mov_b32 s{sRDo}, s75"); A(f"v_mov_b32 v{vRD}, v{vRY}")
        A("s_waitcnt vmcnt(0)")
        for r in range(12): A(f"v_mov_b32 v{GR+r}, v{G2+r}")
        A(f"s_call_b64 {sRET}, L_red_check")
    else:
        A("s_mov_b64 s[82:83], -1"); A(f"s_mov_b32 s{sCNT}, 0")
        A("s_waitcnt vmcnt(0)")
        b_ = RING
        A(f"v_cmp_eq_u32 s[76:77], s{sTAG}, v{b_+3}"); A(f"v_cmp_eq_u32 s[78:79], s{sTAG}, v{b_+7}"); A(f"v_cmp_eq_u32 s[80:81], s{sTAG}, v{b_+11}")
        A("s_and_b64 s[76:77], s[76:77], s[78:79]"); A("s_and_b64 exec, s[76:77], s[80:81]"); A("s_cbranch_scc0 L_yi")
        for r in (0, 1, 2, 4, 5, 6, 8, 9): A(f"v_mul_f32 v{GR+r}, v{b_+r}, v{vWt}")
        A("s_andn2_b64 s[82:83], s[82:83], exec"); A("s_cbranch_scc0 L_ydone")
        A("L_yi:"); A("s_mov_b64 exec, s[82:83]")
        for k_ in range(NP):
            yload(k_)
            if k_ < NP - 1: A(f"s_sleep {pg}")
        A("L_yp:")
        for k_ in range(NP):
            b_ = RING + 12 * k_
            A(f"s_waitcnt vmcnt({3*(NP-1)})")
            A(f"v_cmp_eq_u32 s[76:77], s{sTAG}, v{b_+3}"); A(f"v_cmp_eq_u32 s[78:79], s{sTAG}, v{b_+7}"); A(f"v_cmp_eq_u32 s[80:81], s{sTAG}, v{b_+11}")
            A("s_and_b64 s[76:77], s[76:77], s[78:79]"); A("s_and_b64 exec, s[76:77], s[80:81]"); A(f"s_cbranch_scc0 L_yn{k_}")
            for r in (0, 1, 2, 4, 5, 6, 8, 9): A(f"v_mul_f32 v{GR+r}, v{b_+r}, v{vWt}")
            A("s_andn2_b64 s[82:83], s[82:83], exec"); A("s_cbranch_scc0 L_ydone")
            A(f"L_yn{k_}:")
            A("s_mov_b64 exec, s[82:83]")
            yload(k_)
        A(f"s_add_u32 s{sCNT}, s{sCNT}, 1"); A(f"s_cmp_lt_u32 s{sCNT}, 0x200000"); A("s_cbranch_scc1 L_yp")
        A("L_ydone:")
        A("s_mov_b64 exec, -1")
        A(f"s_call_b64 {sRET}, L_red_tree")
    A("s_nop 1")
    u = GR
    rnd(u); A(f"v_mul_f32 v{u}, v{u}, v{vG}"); rnd(u); A(f"v_add_f32 v{u}, v{u}, v{vXF}"); A(f"v_cvt_pk_bf16_f32 v{u}, v{u}, v{u}")
    A("s_mov_b32 exec_lo, 0x01010101"); A("s_mov_b32 exec_hi, 0x01010101")
    A(f"buffer_store_short v{u}, v{vW1}, {sOUT}, 0 offen {ost}")
    A(f"s_cmp_lg_u32 s{sJ}, 0"); A("s_cbranch_scc1 L_fin")
    A("s_mov_b64 exec, 1")
    A(f"v_mov_b32 v{u+1}, s{sTAG}"); A(f"s_lshl_b32 s{sT1}, s{sB}, 8"); A(f"v_mov_b32 v{u+2}, s{sT1}")
    A(f"buffer_store_dword v{u+1}, v{u+2}, {sWS}, 0 offen {ost}")
    A("L_fin:")
    if stamps:
        A("s_mov_b64 exec, -1"); stamp(1)
        A("s_getreg_b32 s94, hwreg(HW_REG_XCC_ID)")
        A("s_nop 0"); A("v_writelane_b32 v2, s92, 0"); A("v_writelane_b32 v2, s94, 15")
        if amp:
            la, lb, fac, awg, fix = (list(amp) + [0, 0])[:5]
            A(f"s_cmp_lg_u32 s2, {awg}"); A("s_cbranch_scc1 L_end"); A("s_cmp_lg_u32 s3, 7"); A("s_cbranch_scc1 L_end")
            A("s_nop 1"); A(f"v_readlane_b32 s76, v2, {la}"); A(f"v_readlane_b32 s77, v2, {lb}"); A("v_readlane_b32 s78, v2, 1")
            A("s_sub_u32 s77, s77, s76"); A(f"s_mul_i32 s77, s77, {fac}"); A(f"s_add_u32 s77, s77, {fix}"); A("s_min_u32 s77, s77, 100000")
            A("L_amp:"); A("s_memrealtime s[80:81]"); A("s_waitcnt lgkmcnt(0)"); A("s_sub_u32 s79, s80, s78"); A("s_cmp_lt_u32 s79, s77"); A("s_cbranch_scc1 L_amp")
            A("s_endpgm")
        A("s_add_u32 s44, s88, 0x10000000"); A("s_addc_u32 s45, s89, 0")
        A("s_lshl_b32 s94, s2, 3"); A("s_add_u32 s94, s94, s3"); A("s_lshl_b32 s94, s94, 6")
        A(f"v_lshlrev_b32 v62, 2, v{vL}"); A("s_mov_b64 exec, 0xffff")
        A(f"buffer_store_dword v2, v62, {sWS}, s94 offen")
    A("L_end:"); A("s_endpgm")

    A("L_pub:")
    for k in range(8): A(f"ds_read_b32 v{vA0+k}, v{vYR} offset:{YP+k*2048}")
    A(f"v_mov_b32 v{vX+3}, s{sTAG}")
    A("s_waitcnt lgkmcnt(0)")
    for k in range(4): A(f"v_add_f32 v{vA0+k}, v{vA0+k}, v{vA0+4+k}")
    A(f"v_add_f32 v{vA0}, v{vA0}, v{vA0+1}"); A(f"v_add_f32 v{vA0+2}, v{vA0+2}, v{vA0+3}"); A(f"v_add_f32 v{vX}, v{vA0}, v{vA0+2}")
    A(f"v_mov_b32_dpp v{vX+1}, v{vX} row_shl:1 {DP}"); A(f"v_mov_b32_dpp v{vX+2}, v{vX} row_shl:2 {DP}")
    A(f"v_cndmask_b32 v{vX+2}, v{vX+2}, v{vZ}, {sMz}")
    A("s_mov_b64 exec, s[64:65]")
    A(f"buffer_store_dwordx4 {q4(vX)}, v{vST}, {sWS}, s{sDST} offen {sf}")
    A("s_mov_b64 exec, -1")
    A("L_proj_ret:")
    A(f"s_setpc_b64 {sRET}")
    A("L_red_check:")
    A(f"s_mov_b32 s{sCNT}, 0")
    A("L_red_loop:")
    A(f"v_cmp_ne_u32 s[76:77], s{sTAG}, v{GR+3}"); A(f"v_cmp_ne_u32 s[78:79], s{sTAG}, v{GR+7}"); A(f"v_cmp_ne_u32 s[80:81], s{sTAG}, v{GR+11}")
    A("s_or_b64 s[76:77], s[76:77], s[78:79]"); A("s_or_b64 s[76:77], s[76:77], s[80:81]"); A("s_cbranch_scc0 L_red_done")
    if mp: A("s_mov_b64 exec, s[76:77]")
    if psl: A(f"s_sleep {psl}")
    if bo:
        A("s_bcnt1_i32_b64 s78, s[76:77]"); A(f"s_cmp_le_u32 s78, {bo[0]}"); A("s_cbranch_scc1 L_red_ns"); A(f"s_sleep {bo[1]}"); A("L_red_ns:")
    pload(GR)
    A(f"s_add_u32 s{sCNT}, s{sCNT}, 1"); A(f"s_cmp_lt_u32 s{sCNT}, 0x400000")
    A("s_waitcnt vmcnt(0)"); A("s_cbranch_scc1 L_red_loop")
    A("L_red_done:")
    A("s_mov_b64 exec, -1")
    y = [GR, GR + 1, GR + 2, GR + 4, GR + 5, GR + 6, GR + 8, GR + 9]
    for k in range(8): A(f"v_mul_f32 v{y[k]}, v{y[k]}, v{vWt}")
    A("L_red_tree:"); A("s_nop 0")
    tree8(y)
    for c in ("row_half_mirror", "quad_perm:[2,3,0,1]", "quad_perm:[1,0,3,2]"):
        A(f"v_add_f32_dpp v{y[0]}, v{y[0]}, v{y[0]} {c} {DP}")
    A(f"s_setpc_b64 {sRET}")

    body = hazard_pass(a.L)
    out = [HDR.rstrip(), f"; @launch grid=(256,1,1) block=(512,1,1) lds={LDS_SIZE}", '.amdgcn_target "amdgcn-amd-amdhsa--gfx950"', ".text", f".globl {KN}", ".p2align 8", f".type {KN},@function"]
    out += [(l if l.endswith(":") else "    " + l) for l in body]
    out += ['.section .rodata,"a"', ".p2align 6", f".amdhsa_kernel {KN}", "  .amdhsa_next_free_vgpr 256", "  .amdhsa_next_free_sgpr 102", "  .amdhsa_accum_offset 256",
            "  .amdhsa_group_segment_fixed_size 0", "  .amdhsa_kernarg_size 104", "  .amdhsa_user_sgpr_count 2", "  .amdhsa_user_sgpr_kernarg_segment_ptr 1",
            "  .amdhsa_system_sgpr_workgroup_id_x 1", ".end_amdhsa_kernel"]
    return "\n".join(out) + "\n"

if __name__ == "__main__":
    from build import build
    names = []
    for spec in sys.argv[1:]:
        name, _, rest = spec.partition(":")
        kw = {}
        for x in filter(None, rest.split(",")):
            k, v = x.split("=")
            kw[k] = v.replace("+", " ") if k in ("wnt", "kvnt", "wont", "ost", "afl", "sf", "lf") else (tuple(int(t) for t in v.split("/")) if k in ("amp", "bars", "xt", "bk", "lv", "bo") else int(v))
        p = f"exp/{name}.s"
        open(p, "w").write(gen(**kw)); build(p); names.append(name)
    print(LDS_SIZE, ", ".join(f'"exp/{n}.co"' for n in names))
```
